```python
import torch

def _softmax(x, axis=-1):
    return torch.softmax(x, dim=axis)

def _gelu(x):
    return torch.nn.functional.gelu(x, approximate='tanh')

def _silu(x):
    return torch.nn.functional.silu(x)

def _sigmoid(x):
    return torch.sigmoid(x)

def _layernorm(x, axis=-1, eps=1e-05):
    m = x.mean(dim=axis, keepdim=True)
    v = x.var(dim=axis, keepdim=True, unbiased=False)
    return (x - m) / torch.sqrt(v + eps)

def _scatter_add(tgt, idx, src, axis=0):
    return tgt.clone().index_add_(axis, idx, src)

def _segment_sum(src, seg, n):
    out = torch.zeros((n,) + src.shape[1:], dtype=src.dtype)
    return out.index_add_(0, seg, src)

def _pad(x, pw):
    flat = tuple((v for pair in reversed(pw) for v in pair))
    return torch.nn.functional.pad(x, flat)
kernel_name = 'sequential_preLN__memory_aug_recurrent_mem_tr__dense_activation_relu__prompt'

def setup_inputs():

    _w = lambda a: (lambda t: t.to(torch.bfloat16) if t.is_floating_point() else t)(torch.as_tensor(a))

    def _A_setup():
        B, S, Dm = (1, 2048, 576)
        H, Dh = (32, 128)
        M, seg = (8, 32)
        seg = min(seg, S)
        S = S // seg * seg
        return {'x': _w((lambda *s: torch.randn(*s, dtype=torch.bfloat16) * 0.05)(B, S, Dm)), 'mem0': _w((lambda *s: torch.randn(*s, dtype=torch.bfloat16) * 0.2)(B, M, Dm)), 'Wq': _w((lambda *s: torch.randn(*s, dtype=torch.bfloat16) * 1.6)(Dm, H, Dh) * Dm ** (-0.5)), 'Wk': _w((lambda *s: torch.randn(*s, dtype=torch.bfloat16) * 1.6)(Dm, H, Dh) * Dm ** (-0.5)), 'Wv': _w((lambda *s: torch.randn(*s, dtype=torch.bfloat16) * 0.2)(Dm, H, Dh) * Dm ** (-0.5)), 'Wo': _w((lambda *s: torch.randn(*s, dtype=torch.bfloat16) * 0.2)(H, Dh, Dm) * (H * Dh) ** (-0.5)), 'seg_len': seg}
    _A_in = _A_setup()

    def _B_setup():
        B, S, D, Dff = (1, 2048, 576, 4608)
        return {'x': _w((lambda *s: torch.randn(*s, dtype=torch.bfloat16) * 0.05)(B, S, D)), 'w1': _w((lambda *s: torch.randn(*s, dtype=torch.bfloat16) * 0.05)(D, Dff)), 'w2': _w((lambda *s: torch.randn(*s, dtype=torch.bfloat16) * 0.05)(Dff, D))}
    _B_in = _B_setup()
    return {'A_x': _A_in['x'], 'A_mem0': _A_in['mem0'], 'A_Wq': _A_in['Wq'], 'A_Wk': _A_in['Wk'], 'A_Wv': _A_in['Wv'], 'A_Wo': _A_in['Wo'], 'A_seg_len': _A_in['seg_len'], 'B_x': _B_in['x'], 'B_w1': _B_in['w1'], 'B_w2': _B_in['w2']}

def reference(A_x, A_mem0, A_Wq, A_Wk, A_Wv, A_Wo, A_seg_len, B_x, B_w1, B_w2):

    def _A_ref(x, mem0, Wq, Wk, Wv, Wo, seg_len):
        B, S, Dm = x.shape
        H, Dh = (Wq.shape[1], Wq.shape[2])
        M = mem0.shape[1]
        scale = Dh ** (-0.5)
        n_seg = S // seg_len
        L = M + seg_len
        idx = torch.arange(L)
        mask = (idx[:, None] < M) | (idx[:, None] >= idx[None, :])
        mem = mem0
        outs = []
        for s in range(n_seg):
            xs = x[:, s * seg_len:(s + 1) * seg_len, :].clone()
            h = torch.concatenate([mem, xs], axis=1)
            q = torch.einsum('btd,dhe->bhte', h, Wq)
            k = torch.einsum('btd,dhe->bhte', h, Wk)
            v = torch.einsum('btd,dhe->bhte', h, Wv)
            scores = torch.einsum('bhqe,bhke->bhqk', q, k) * scale
            scores = torch.where(mask[None, None], scores, -1000000000.0)
            p = _softmax(scores, axis=-1)
            o = torch.einsum('bhqk,bhke->bhqe', p, v)
            o = torch.einsum('bhte,hed->btd', o, Wo)
            mem = o[:, :M, :].clone()
            outs.append(o[:, M:, :])
        return torch.concatenate(outs, axis=1)

    def _B_ref(x, w1, w2):
        h = torch.einsum('bsd,df->bsf', x, w1)
        zero = torch.zeros_like(h)
        h = torch.maximum(h, zero)
        return torch.einsum('bsf,fd->bsd', h, w2)
    x = A_x
    h = x + _A_ref(_layernorm(x, axis=-1), A_mem0, A_Wq, A_Wk, A_Wv, A_Wo, A_seg_len)
    h2 = h + _B_ref(_layernorm(h, axis=-1), B_w1, B_w2)
    return h2
```

```python
def v(i, n=1):
    return f"v{i}" if n == 1 else f"v[{i}:{i+n-1}]"
def a(i, n=1):
    return f"a{i}" if n == 1 else f"a[{i}:{i+n-1}]"
def s(i, n=1):
    return f"s{i}" if n == 1 else f"s[{i}:{i+n-1}]"
def r(i, n=1):
    if i < 256:
        assert i + n <= 256, (i, n)
        return v(i, n)
    return a(i - 256, n)

class Asm:
    def __init__(self):
        self.lines = []
        self._lab = 0
    def __call__(self, text):
        for ln in text.split("\n"):
            self.lines.append("    " + ln.strip() if ln.strip() and not ln.strip().endswith(":") else ln.strip())
    def raw(self, text):
        self.lines.append(text)
    def c(self, text):
        self.lines.append("    ; " + text)
    def label(self, name):
        self.lines.append(name + ":")
    def newlabel(self, base="L"):
        self._lab += 1
        return f"{base}_{self._lab}"
    def text(self):
        return "\n".join(self.lines) + "\n"

KHDR = """.amdgcn_target "amdgcn-amd-amdhsa--gfx950"
.text
"""
def kernel_begin(name):
    return f".globl {name}\n.p2align 8\n.type {name},@function\n{name}:\n"
def kernel_desc(name, vgpr=512, accum=256, sgpr=102):
    return f""".section .rodata,"a"
.p2align 6
.amdhsa_kernel {name}
  .amdhsa_next_free_vgpr {vgpr}
  .amdhsa_next_free_sgpr {sgpr}
  .amdhsa_accum_offset {accum}
  .amdhsa_group_segment_fixed_size 0
  .amdhsa_kernarg_size 104
  .amdhsa_user_sgpr_count 2
  .amdhsa_user_sgpr_kernarg_segment_ptr 1
  .amdhsa_system_sgpr_workgroup_id_x 1
  .amdhsa_float_denorm_mode_32 3
  .amdhsa_float_denorm_mode_16_64 3
.end_amdhsa_kernel
.text
"""
```

```python
from asmgen import *
from layout import *

sH, sWv, sS, sTO = 16, 17, 18, 19
sT0, sT1, sT2, sT3 = 20, 21, 22, 23
sMa, sMb, sMc = 24, 25, 26
sPst = 27
sPld = 28
sMst, sMrst, sPub, sMl, sKD0, sKD1, sVD, sTask = 32, 33, 34, 35, 36, 37, 38, 39
sLo  = 40
sHi  = 42
sMm0 = 44
sMm1 = 45
sMm2 = 46
sSelM = 47
sScale = 52
sMbase = 54
sWreg = 55
sPst2 = 56
sPst3 = 57
sBound = 58
sKSm0 = 60
sKSm1 = 61
sPtask = 62
sMoff = 63
sSt = 64
vL16, vIdx, vKS, vXW, vXR, vOW, vOR, vPS, vPL, vMS, vKD, vVD, vXA, vXB = range(56, 70)
ONES = 70
NWORK = 72
def regslot(i):
    assert 0 <= i < 55
    return 72 + 8 * i if i < 23 else 256 + 8 * (i - 23)
QKV_REG = {}; QKV_LDS = {}
_i = 0; _o = 0
for kk in range(9):
    for X in range(3):
        for sub in range(2):
            if X == 2 and (kk <= 3 or (kk == 4 and sub == 1)):
                QKV_LDS[(X, kk, sub)] = _o; _o += 2048
            else:
                QKV_REG[(X, kk, sub)] = regslot(_i); _i += 1
assert _i == 45 and _o == 18432
WO_REG = {}; WO_LDS = {}
for a_ in range(5):
    for kb in range(2):
        for sub in range(2):
            sig = a_ * 4 + kb * 2 + sub
            if sig < 10:
                WO_REG[(a_, kb, sub)] = regslot(_i); _i += 1
            else:
                WO_LDS[(a_, kb, sub)] = _o; _o += 2048
assert _i == 55
TIMEOUT = 1 << 18

def stamp(A, i, prof):
    if prof:
        A(f"s_memtime {s(sSt + 2*i, 2)}")
        A("s_waitcnt lgkmcnt(0)")


def chain_setup(A):
    A.c("---- chain setup ----")
    A(f"s_load_dwordx2 s[4:5], s[0:1], 96")
    A(f"s_load_dwordx2 s[12:13], s[0:1], 88")
    A("v_lshrrev_b32 v1, 6, v0")
    A("s_nop 0")
    A(f"v_readfirstlane_b32 s{sWv}, v1")
    A("s_waitcnt lgkmcnt(0)")
    A(f"s_mov_b32 s6, {WS_SIZE}\ns_mov_b32 s7, 0x20000\ns_mov_b32 s14, 256\ns_mov_b32 s15, 0x20000")
    A("v_and_b32 v0, 63, v0")
    A(f"""s_mul_i32 s{sT0}, s{sWv}, 38912
    s_sub_u32 s{sT1}, s{sWv}, 2
    s_mul_i32 s{sT1}, s{sT1}, 30720
    s_add_u32 s{sT1}, s{sT1}, 77824
    s_cmp_lt_u32 s{sWv}, 2
    s_cselect_b32 s{sWreg}, s{sT0}, s{sT1}
    s_lshl_b32 s{sT0}, s{sWv}, 10
    s_add_u32 s{sMoff}, s{sT0}, {OFF_M - LDS_MEM}
    s_add_u32 s{sMm0}, s{sT0}, {LDS_MEM}
    s_add_u32 s{sMm1}, s{sMm0}, 4096
    s_mov_b32 s{sMm2}, {LDS_MEM + 8192}""")
    A("v_and_b32 v1, 15, v0\nv_lshrrev_b32 v2, 4, v0\nv_bfe_u32 v3, v0, 3, 1\nv_and_b32 v4, 7, v0")
    A(f"v_lshlrev_b32 v5, 4, v0\nv_add_u32 v{vL16}, s{sWreg}, v5")
    A(f"v_add_u32 v{vXA}, {LDS_MEM}, v5\nv_xor_b32 v5, 128, v5\nv_add_u32 v{vXB}, {LDS_MEM}, v5")
    A(f"v_mov_b32 v5, 0x4444\nv_mov_b32 v6, 0xeeee\nv_cmp_eq_u32 vcc, 1, v3\nv_cndmask_b32 v{vIdx}, v5, v6, vcc")
    A(f"""v_lshrrev_b32 v5, 2, v1
    v_lshlrev_b32 v5, 3, v5
    v_and_b32 v6, 3, v1
    v_add_u32 v5, v5, v6
    v_lshlrev_b32 v5, 8, v5
    v_xor_b32 v6, v2, v1
    v_lshlrev_b32 v6, 4, v6
    v_add_u32 v5, v5, v6
    v_add_u32 v{vKS}, {LDS_KS}, v5""")
    A(f"""s_lshl_b32 s{sT0}, s{sWv}, 5
    v_lshrrev_b32 v5, 1, v2
    v_lshlrev_b32 v5, 4, v5
    v_add_u32 v5, v5, v1
    v_add_u32 v7, s{sT0}, v5
    v_lshlrev_b32 v5, 5, v7
    v_and_b32 v6, 1, v2
    v_lshlrev_b32 v6, 3, v6
    v_add_u32 v5, v5, v6
    v_add_u32 v{vXW}, {LDS_XQK}, v5""")
    A(f"v_lshlrev_b32 v5, 4, v7\nv_add_u32 v{vPS}, v5, v6")
    A(f"""v_lshlrev_b32 v5, 3, v2
    v_lshrrev_b32 v6, 2, v1
    v_add_u32 v5, v5, v6
    v_lshlrev_b32 v5, 5, v5
    v_and_b32 v6, 1, v0
    v_lshlrev_b32 v6, 3, v6
    v_add_u32 v5, v5, v6
    v_add_u32 v{vXR}, {LDS_XQK}, v5""")
    A(f"""s_lshl_b32 s{sT0}, s{sWv}, 2
    v_lshlrev_b32 v5, 1, v3
    v_lshrrev_b32 v6, 1, v2
    v_add_u32 v5, v5, v6
    v_add_u32 v5, s{sT0}, v5
    v_lshlrev_b32 v6, 1, v4
    v_xor_b32 v5, v5, v6
    v_lshlrev_b32 v5, 4, v5
    v_lshlrev_b32 v6, 8, v4
    v_add_u32 v5, v5, v6
    v_and_b32 v6, 1, v2
    v_lshlrev_b32 v6, 3, v6
    v_add_u32 v5, v5, v6
    v_add_u32 v{vOW}, {LDS_XO}, v5""")
    A(f"""v_lshlrev_b32 v5, 1, v2
    v_add_u32 v5, v5, v3
    v_lshlrev_b32 v6, 1, v4
    v_xor_b32 v5, v5, v6
    v_lshlrev_b32 v5, 4, v5
    v_lshlrev_b32 v6, 8, v4
    v_add_u32 v5, v5, v6
    v_add_u32 v{vOR}, {LDS_XO}, v5""")
    A(f"""v_lshlrev_b32 v5, 1, v2
    v_add_u32 v5, v5, v3
    v_mul_u32_u24 v5, 9216, v5
    v_lshlrev_b32 v6, 4, v4
    v_add_u32 v{vPL}, v5, v6""")
    A(f"""v_and_b32 v5, 1, v2
    v_lshlrev_b32 v5, 3, v5
    v_lshrrev_b32 v6, 1, v2
    v_lshlrev_b32 v6, 2, v6
    v_add_u32 v5, v5, v6
    v_lshlrev_b32 v6, 4, v1
    v_add_u32 v5, v5, v6
    v_mov_b32 v6, 0x80000000
    v_cmp_eq_u32 vcc, 1, v3
    v_cndmask_b32 v{vMS}, v5, v6, vcc""")
    A(f"""s_lshl_b32 s{sT0}, s{sWv}, 3
    v_add_u32 v5, s{sT0}, v2
    v_lshlrev_b32 v5, 13, v5
    s_lshl_b32 s{sT0}, s{sWv}, 2
    v_add_u32 v6, s{sT0}, v2
    v_xor_b32 v6, v6, v1
    v_lshlrev_b32 v6, 4, v6
    v_add_u32 v{vKD}, v5, v6""")
    A(f"""s_lshl_b32 s{sT0}, s{sWv}, 5
    v_add_u32 v5, s{sT0}, v1
    v_lshlrev_b32 v5, 6, v5
    v_lshlrev_b32 v6, 4, v2
    v_add_u32 v{vVD}, v5, v6""")
    for i in range(2): A(f"v_mov_b32 v{ONES+i}, 0x3f803f80")
    A(f"s_mov_b32 s{sLo}, -1\ns_mov_b32 s{sLo+1}, 0\ns_mov_b32 s{sHi}, 0\ns_mov_b32 s{sHi+1}, -1")
    A(f"s_mov_b32 s{sScale}, 0x3e0293ee\ns_mov_b32 s{sScale+1}, 0x3e0293ee")
    A(f"s_mov_b32 s{sBound}, 0x42200000")
    for p, m in enumerate([0x00030003, 0x000c000c, 0x00300030, 0x00c000c0]):
        pass
    A(f"""s_sub_u32 s{sT0}, s{sWv}, 2
    s_lshl_b32 s{sT0}, s{sT0}, 5
    s_add_u32 s{sT0}, s{sT0}, s{sH}
    s_add_u32 s{sT1}, s{sH}, 64
    s_cmp_lt_u32 s{sH}, 8
    s_cselect_b32 s{sT1}, s{sT1}, -1
    s_cmp_eq_u32 s{sWv}, 1
    s_cselect_b32 s{sT1}, s{sT1}, -1
    s_cmp_ge_u32 s{sWv}, 2
    s_cselect_b32 s{sTask}, s{sT0}, s{sT1}""")
    A(f"""s_lshr_b32 s{sT0}, s{sTask}, 3
    s_lshl_b32 s{sT0}, s{sT0}, 10
    s_lshr_b32 s{sT1}, s{sTask}, 1
    s_and_b32 s{sT1}, s{sT1}, 3
    s_lshl_b32 s{sT1}, s{sT1}, 8
    s_add_u32 s{sT0}, s{sT0}, s{sT1}
    s_and_b32 s{sT1}, s{sTask}, 1
    s_lshl_b32 s{sT1}, s{sT1}, 7
    s_add_u32 s{sMl}, s{sT0}, s{sT1}
    s_add_u32 s{sMbase}, s{sMl}, {OFF_M}
    s_lshl_b32 s{sPtask}, s{sTask}, 7""")
    A(f"""s_lshl_b32 s{sT0}, s{sWv}, 11
    s_add_u32 s{sKSm0}, s{sT0}, {LDS_KS}
    s_add_u32 s{sKSm1}, s{sKSm0}, 1024""")

def chain_load_weights(A):
    A.c("---- weights prologue ----")
    A("""v_lshrrev_b32 v5, 2, v0
    v_lshlrev_b32 v6, 13, v5
    v_and_b32 v7, 3, v0
    v_lshlrev_b32 v7, 4, v7
    v_add_u32 v8, v6, v7
    v_mul_u32_u24 v6, 1152, v5
    v_add_u32 v9, v6, v7""")
    A(f"""v_lshrrev_b32 v5, 1, v2
    v_lshlrev_b32 v5, 4, v5
    v_and_b32 v6, 1, v2
    v_lshlrev_b32 v6, 2, v6
    v_add_u32 v5, v5, v6
    v_bfe_u32 v6, v1, 2, 1
    v_add_u32 v5, v5, v6
    v_bfe_u32 v6, v1, 3, 1
    v_lshlrev_b32 v7, 3, v6
    v_add_u32 v5, v5, v7
    v_lshlrev_b32 v5, 6, v5
    v_lshlrev_b32 v6, 5, v6
    v_add_u32 v5, v5, v6
    v_and_b32 v6, 3, v0
    v_lshlrev_b32 v6, 3, v6
    v_add_u32 v5, v5, v6
    v_xor_b32 v7, 512, v5
    v_add_u32 v10, s{sWreg}, v5
    v_add_u32 v11, s{sWreg}, v7
    s_lshl_b32 s{sT2}, s{sWv}, 12
    s_add_u32 s{sT2}, s{sT2}, {LDS_KS}
    v_add_u32 v28, s{sT2}, v5
    v_add_u32 v29, s{sT2}, v7""")
    karg = {0: 16, 1: 24, 2: 32, 3: 40}
    pieces = []
    for X in range(3):
        for kk in range(9):
            if (X, kk, 0) in QKV_REG and (X, kk, 1) in QKV_REG: pieces.append(('q', X, kk))
    for a_ in range(5):
        for kb in range(2):
            if (a_, kb, 0) in WO_REG: pieces.append(('o', a_, kb))
    nreg = len(pieces)
    ldsp = [('q', 2, kk) for kk in range(4)] + [('o', a_, kb) for a_ in range(5) for kb in range(2) if (a_, kb, 0) in WO_LDS]
    NR = 7
    cur = [None]
    def set_srd(m):
        if cur[0] == m: return
        cur[0] = m
        A(f"s_load_dwordx2 s[8:9], s[0:1], {karg[m]}\ns_waitcnt lgkmcnt(0)\ns_mov_b32 s10, 4718592\ns_mov_b32 s11, 0x20000")
    def issue(p, ldsoff, base=None):
        kind, x, y = p
        if kind == 'q':
            set_srd(x)
            A(f"s_lshl_b32 s{sT0}, s{sH}, 8\ns_lshl_b32 s{sT1}, s{sWv}, 6\ns_add_u32 s{sT0}, s{sT0}, s{sT1}\ns_add_u32 s{sT0}, s{sT0}, {y*64*8192}")
            vo, step = 8, 16 * 8192
        else:
            set_srd(3)
            A(f"s_mul_i32 s{sT0}, s{sH}, 147456\ns_lshl_b32 s{sT1}, s{sWv}, 6\ns_add_u32 s{sT0}, s{sT0}, s{sT1}\ns_add_u32 s{sT0}, s{sT0}, {y*64*1152 + x*256}")
            vo, step = 9, 16 * 1152
        A(f"s_add_u32 s{sT1}, s{base if base is not None else sWreg}, {ldsoff}")
        for q in range(4):
            A(f"s_mov_b32 m0, s{sT1}")
            A(f"buffer_load_dwordx4 v{vo}, s[8:11], s{sT0} offen lds")
            if q < 3: A(f"s_add_u32 s{sT0}, s{sT0}, {step}\ns_add_u32 s{sT1}, s{sT1}, 1024")
    def trread(dst0, dst1, ldsoff, ab=10):
        for sub, dst in ((0, dst0), (1, dst1)):
            for hf in range(2):
                for sec in range(2):
                    A(f"ds_read_b64_tr_b16 {r(dst + 4*hf + 2*sec, 2)}, v{ab+sub} offset:{ldsoff + (32*hf + 2*sec)*64}")
    issue(('q', 2, 4), 0, base=sT2)
    for i in range(NR): issue(pieces[i], i * 4096)
    for i in range(nreg):
        rem = min(nreg, i + NR) - (i + 1)
        A(f"s_waitcnt vmcnt({4*rem})")
        kind, x, y = pieces[i]
        d = (QKV_REG[(x, y, 0)], QKV_REG[(x, y, 1)]) if kind == 'q' else (WO_REG[(x, y, 0)], WO_REG[(x, y, 1)])
        trread(d[0], d[1], (i % NR) * 4096)
        A("s_waitcnt lgkmcnt(0)")
        if i + NR < nreg: issue(pieces[i + NR], (i % NR) * 4096)
    Lskip = A.newlabel("Lsk4")
    def off_of(p):
        kind, x, y = p
        return QKV_LDS[(2, y, 0)] if kind == 'q' else WO_LDS[(x, y, 0)]
    main = [p for p in ldsp if not (p[0] == 'o' and p[1] == 4)]
    last = [p for p in ldsp if (p[0] == 'o' and p[1] == 4)]
    def convert(plist):
        A("s_waitcnt vmcnt(0)")
        for p in plist:
            o = off_of(p)
            trread(12, 20, o)
            A("s_waitcnt lgkmcnt(0)")
            for sub in range(2):
                for hf in range(2):
                    A(f"ds_write_b128 v{vL16}, {v(12 + 8*sub + 4*hf, 4)} offset:{o + sub*2048 + hf*1024}")
            A("s_waitcnt lgkmcnt(0)")
    for p in main: issue(p, off_of(p))
    A(f"s_cmp_ge_u32 s{sWv}, 2\ns_cbranch_scc1 {Lskip}")
    for p in last: issue(p, off_of(p))
    convert(last)
    A.label(Lskip)
    convert(main)
    trread(QKV_REG[(2, 4, 0)], 20, 0, ab=28)
    A("s_waitcnt lgkmcnt(0)")
    o = QKV_LDS[(2, 4, 1)]
    for hf in range(2): A(f"ds_write_b128 v{vL16}, {v(20 + 4*hf, 4)} offset:{o + hf*1024}")
    A("s_waitcnt lgkmcnt(0)")

def chain_init_buffers(A, sc):
    A.c("---- init exchange buffers ----")
    A("v_mov_b32 v12, -1\nv_mov_b32 v13, -1\nv_mov_b32 v14, -1\nv_mov_b32 v15, -1\nv_lshlrev_b32 v16, 4, v0")
    L1 = A.newlabel("Lip"); L2 = A.newlabel("Lim"); L3 = A.newlabel("Lim0")
    A(f"s_cmp_ge_u32 s{sWv}, 2\ns_cbranch_scc1 {L1}")
    A(f"s_mul_i32 s{sT0}, s{sWv}, {P_SLOT}\ns_mul_i32 s{sT1}, s{sH}, 9216\ns_add_u32 s{sT0}, s{sT0}, s{sT1}\ns_add_u32 s{sT0}, s{sT0}, {OFF_P}")
    for kk in range(9):
        A(f"buffer_store_dwordx4 v[12:15], v16, s[4:7], s{sT0} offen{sc}\ns_add_u32 s{sT0}, s{sT0}, 1024")
    A.label(L1)
    A(f"s_cmp_lg_u32 s{sWv}, 2\ns_cbranch_scc1 {L2}")
    A(f"s_cmp_ge_u32 s{sH}, 4\ns_cbranch_scc1 {L2}")
    A(f"s_cmp_eq_u32 s{sH}, 0\ns_cbranch_scc1 {L3}")
    A(f"s_mul_i32 s{sT0}, s{sH}, {M_SLOT}\ns_add_u32 s{sT0}, s{sT0}, {OFF_M}")
    for kk in range(9):
        A(f"buffer_store_dwordx4 v[12:15], v16, s[4:7], s{sT0} offen{sc}\ns_add_u32 s{sT0}, s{sT0}, 1024")
    A(f"s_branch {L2}")
    A.label(L3)
    A("s_load_dwordx2 s[8:9], s[0:1], 8\ns_waitcnt lgkmcnt(0)\ns_mov_b32 s10, 9216\ns_mov_b32 s11, 0x20000")
    A("""v_mul_u32_u24 v17, 1152, v4
    v_lshlrev_b32 v18, 5, v2
    v_add_u32 v17, v17, v18
    v_lshlrev_b32 v18, 4, v3
    v_add_u32 v17, v17, v18""")
    A(f"s_mov_b32 s{sT0}, {OFF_M}\ns_mov_b32 s{sT1}, {OFF_MEMS}")
    for kk in range(9):
        A(f"buffer_load_dwordx4 v[20:23], v17, s[8:11], 0 offen offset:{128*kk}\ns_waitcnt vmcnt(0)")
        for q in range(4): A(f"v_min_u32 v{20+q}, -2, v{20+q}")
        A(f"buffer_store_dwordx4 v[20:23], v16, s[4:7], s{sT0} offen{sc}\nbuffer_store_dwordx4 v[20:23], v16, s[4:7], s{sT1} offen sc1\ns_add_u32 s{sT0}, s{sT0}, 1024\ns_add_u32 s{sT1}, s{sT1}, 1024\ns_waitcnt vmcnt(0)")
    A.label(L2)

def init_offsets(A):
    A(f"""s_mov_b32 s{sS}, 0
    s_mov_b32 s{sMa}, s{sMoff}
    s_add_u32 s{sMb}, s{sMa}, 4096
    s_add_u32 s{sMc}, {OFF_M - LDS_MEM + 8192}, 0
    s_add_u32 s{sMst}, s{sMbase}, {M_SLOT}
    s_add_u32 s{sMrst}, s{sMbase}, {3*M_SLOT}
    s_add_u32 s{sPub}, s{sMl}, {OFF_MEMS + MEMS_STRIDE}
    s_mul_i32 s{sT1}, s{sH}, 9216
    s_add_u32 s{sPst}, s{sT1}, {OFF_P}
    s_add_u32 s{sPst2}, s{sPst}, 4096
    s_add_u32 s{sPst3}, s{sPst}, 8192
    s_add_u32 s{sPld}, s{sPtask}, {OFF_P}
    s_add_u32 s{sPld+1}, s{sPld}, {8*9216}
    s_add_u32 s{sPld+2}, s{sPld+1}, {8*9216}
    s_add_u32 s{sPld+3}, s{sPld+2}, {8*9216}
    s_lshl_b32 s{sT1}, s{sH}, 8
    s_add_u32 s{sKD0}, s{sT1}, {OFF_K}
    s_add_u32 s{sKD1}, s{sKD0}, 32768
    s_lshl_b32 s{sT0}, s{sH}, 13
    s_add_u32 s{sVD}, s{sT0}, {OFF_VT}""")

def advance_offsets(A):
    A(f"""s_add_u32 s{sS}, s{sS}, 1
    s_and_b32 s{sT0}, s{sS}, 3
    s_lshl_b32 s{sT0}, s{sT0}, 14
    s_add_u32 s{sMa}, s{sMoff}, s{sT0}
    s_add_u32 s{sMb}, s{sMa}, 4096
    s_add_u32 s{sMc}, s{sT0}, {OFF_M - LDS_MEM + 8192}
    s_add_u32 s{sT0}, s{sT0}, {M_SLOT}
    s_and_b32 s{sT1}, s{sT0}, {3*M_SLOT}
    s_add_u32 s{sMst}, s{sMbase}, s{sT1}
    s_add_u32 s{sT0}, s{sT0}, {2*M_SLOT}
    s_and_b32 s{sT1}, s{sT0}, {3*M_SLOT}
    s_add_u32 s{sMrst}, s{sMbase}, s{sT1}
    s_xor_b32 s{sPst}, s{sPst}, {P_SLOT}
    s_xor_b32 s{sPst2}, s{sPst2}, {P_SLOT}
    s_xor_b32 s{sPst3}, s{sPst3}, {P_SLOT}
    s_add_u32 s{sVD}, s{sVD}, 262144""")

def dma_ks(A):
    A(f"s_mov_b32 m0, s{sKSm0}")
    A(f"buffer_load_dwordx4 v{vKD}, s[4:7], s{sKD0} offen lds")
    A(f"s_mov_b32 m0, s{sKSm1}")
    A(f"buffer_load_dwordx4 v{vKD}, s[4:7], s{sKD1} offen lds")
    A(f"s_add_u32 s{sKD0}, s{sKD0}, 262144\ns_add_u32 s{sKD1}, s{sKD1}, 262144")

class Cnt:
    def __init__(self, A, name, cap): self.A, self.name, self.cap, self.q = A, name, cap, []
    def issue(self, tag, n=1): self.q += [tag] * n
    def wait(self, *tags):
        idx = max((i for i, t in enumerate(self.q) if t in tags), default=-1)
        if idx < 0: return
        n = len(self.q) - 1 - idx
        self.A(f"s_waitcnt {self.name}({min(n, self.cap)})")
        self.q = self.q[idx + 1:] if n <= self.cap else self.q[len(self.q) - self.cap:]
    def all(self):
        self.A(f"s_waitcnt {self.name}(0)"); self.q = []
    def reset(self): self.q = []

def timeout_check(A, loop, fail):
    A(f"s_add_u32 s{sTO}, s{sTO}, 1\ns_cmp_lt_u32 s{sTO}, {TIMEOUT}\ns_cbranch_scc1 {loop}\ns_branch {fail}")

def chain_loop(A, fast=True, prof=False, nsteps=64, pdelay=0):
    sc = "" if fast else " sc1"
    L = Cnt(A, "lgkmcnt", 15); VM = Cnt(A, "vmcnt", 63)
    Lstep = A.newlabel("Lstep"); Lpoll = A.newlabel("Lpoll"); Lok = A.newlabel("Lok"); Lfail = "Lchain_fail"
    Ldone = A.newlabel("Ldone"); Lnored = A.newlabel("Lnored"); Lrp = A.newlabel("Lrp"); Lrok = A.newlabel("Lrok")
    Lfb = A.newlabel("Lfb"); Lexp = A.newlabel("Lexp"); Lno4 = A.newlabel("Lno4"); Lp2 = A.newlabel("Lp2"); Lp3 = A.newlabel("Lp3")
    Lnr2 = A.newlabel("Lnr2")
    XR = [(0, 4), (8, 12)]
    Q, K, V = 16, 20, 24
    SB = [28, 36]
    VT0, VT1 = 44, 48
    T0, T1, T2, T3 = 52, 53, 54, 55
    PUB = 54
    acc = [Q, K, V]
    def dsr(dst, addr, off, tag, n=4, op="ds_read_b128"):
        A(f"{op} {v(dst, n)}, v{addr} offset:{off}"); L.issue(tag)
    def ldv(kk, sub):
        o = QKV_LDS[(2, kk, sub)]
        dsr(SB[sub], vL16, o, ('v', kk, sub)); dsr(SB[sub] + 4, vL16, o + 1024, ('v', kk, sub))
    def ldx(kk):
        dsr(XR[kk % 2][0], vXA, kk * 1024, ('x', kk, 0)); dsr(XR[kk % 2][1], vXB, kk * 1024, ('x', kk, 1))
    def st(i):
        if prof:
            stamp(A, i, prof); L.reset()
    init_offsets(A)
    dma_ks(A)
    A(f"s_mov_b32 s{sTask+0}, s{sTask}")
    A(f"s_mov_b32 s{sT3}, 0")
    A.label(Lstep)
    st(0)
    ldv(0, 0); ldv(0, 1)
    for i in range(6): A(f"v_mov_b64 {v(Q+2*i, 2)}, 0")
    for i in range(4): A(f"v_mov_b32 v{VT0+i}, -1")
    A(f"s_lshl_b32 s{sT0}, s{sWv}, 10\nv_add_u32 v{T0}, s{sT0}, v{vXA}")
    A(f"s_mov_b32 s{sTO}, 0")
    A.label(Lpoll)
    A(f"s_mov_b32 m0, s{sMm0}\nbuffer_load_dwordx4 v{vXA}, s[4:7], s{sMa} offen sc1 lds")
    A(f"s_mov_b32 m0, s{sMm1}\nbuffer_load_dwordx4 v{vXA}, s[4:7], s{sMb} offen sc1 lds")
    A(f"s_cmp_lg_u32 s{sWv}, 0\ns_cbranch_scc1 {Lp2}")
    A(f"s_mov_b32 m0, s{sMm2}\nbuffer_load_dwordx4 v{vXA}, s[4:7], s{sMc} offen sc1 lds")
    A(f"s_waitcnt vmcnt(0)\nds_read_b32 v{T1}, v{vXA} offset:8192\ns_branch {Lp3}")
    A.label(Lp2)
    A(f"s_waitcnt vmcnt(0)\nv_mov_b32 v{T1}, 0")
    A.label(Lp3)
    A(f"ds_read_b32 v{T2+1}, v{T0}\nds_read_b32 v{T0-1}, v{T0} offset:4096\ns_waitcnt lgkmcnt(0)")
    A(f"v_max3_u32 v{T1}, v{T1}, v{T2+1}, v{T0-1}")
    A(f"v_cmp_eq_u32 vcc, -1, v{T1}\ns_cbranch_vccz {Lok}")
    timeout_check(A, Lpoll, Lfail)
    A.label(Lok)
    L.reset()
    A("s_barrier")
    st(1)
    if prof: ldv(0, 0); ldv(0, 1)
    ldx(0); ldx(1)
    A(f"s_cmp_eq_u32 s{sT3}, 0\ns_cbranch_scc1 {Lnr2}")
    A(f"buffer_store_dword v{PUB}, v{vMS}, s[4:7], s{sPub} offen sc1")
    for j in range(4): A(f"buffer_store_dwordx4 {v(VT0,4)}, v{vPL}, s[4:7], s{sPld+j} offen{sc}")
    A(f"s_add_u32 s{sPub}, s{sPub}, {MEMS_STRIDE}")
    for j in range(4): A(f"s_xor_b32 s{sPld+j}, s{sPld+j}, {P_SLOT}")
    A.label(Lnr2)
    ks_pre = {3: [((0, 0), 28), ((1, 0), 32)], 4: [((0, 1), 36), ((1, 1), 40)]}
    ksdst = {}
    def mm(X, kk, sub):
        L.wait(('x', kk, sub))
        areg = XR[kk % 2][sub]
        if (X, kk, sub) in QKV_REG: B = r(QKV_REG[(X, kk, sub)], 8)
        else:
            L.wait(('v', kk, sub)); B = v(SB[sub], 8)
        A(f"v_smfmac_f32_16x16x64_bf16 {v(acc[X],4)}, {v(areg,4)}, {B}, v{vIdx}")
    for kk in range(9):
        mm(0, kk, 0); mm(1, kk, 0); mm(2, kk, 0)
        if (2, kk + 1, 0) in QKV_LDS: ldv(kk + 1, 0)
        if kk + 2 <= 8: dsr(XR[kk % 2][0], vXA, (kk + 2) * 1024, ('x', kk + 2, 0))
        mm(0, kk, 1); mm(1, kk, 1); mm(2, kk, 1)
        if (2, kk + 1, 1) in QKV_LDS: ldv(kk + 1, 1)
        if kk + 2 <= 8: dsr(XR[kk % 2][1], vXB, (kk + 2) * 1024, ('x', kk + 2, 1))
        if kk == 1:
            A(f"buffer_load_dwordx4 {v(VT0,4)}, v{vVD}, s[4:7], s{sVD} offen"); VM.issue('vt')
            A(f"buffer_load_dwordx4 {v(VT1,4)}, v{vVD}, s[4:7], s{sVD} offen offset:1024"); VM.issue('vt')
        if kk == 3:
            dsr(28, vKS, 0, ('ks', 0, 0)); dsr(32, vKS, 1024, ('ks', 1, 0)); ksdst[(0, 0)] = 28; ksdst[(1, 0)] = 32
        if kk == 4:
            A(f"v_xor_b32 v{T1}, 64, v{vKS}")
            dsr(36, T1, 0, ('ks', 0, 1)); dsr(40, T1, 1024, ('ks', 1, 1)); ksdst[(0, 1)] = 36; ksdst[(1, 1)] = 40
    st(2)
    A(f"s_cmp_eq_u32 s{sS}, {nsteps-1}\ns_cbranch_scc1 {Ldone}")
    VPK = 24
    A(f"v_cvt_pk_bf16_f32 v{T0}, v{Q}, v{Q+1}\nv_cvt_pk_bf16_f32 v{T1}, v{Q+2}, v{Q+3}")
    A(f"v_cvt_pk_bf16_f32 v{T2}, v{K}, v{K+1}\nv_cvt_pk_bf16_f32 v{T3}, v{K+2}, v{K+3}")
    A(f"ds_write_b64 v{vXW}, {v(T0,2)}\nds_write_b64 v{vXW}, {v(T2,2)} offset:16"); L.issue('w', 2)
    A(f"v_cvt_pk_bf16_f32 v{VPK}, v{V}, v{V+1}\nv_cvt_pk_bf16_f32 v{VPK+1}, v{V+2}, v{V+3}")
    A(f"v_xor_b32 v26, {2<<6}, v{vKS}\nv_xor_b32 v27, {3<<6}, v{vKS}")
    L.all(); A("s_barrier")
    st(3)
    Bs = [0, 8, 0, 8]; As = [4, 12, 4, 12]
    S0, S1, SM = 16, 20, 52
    def rdset(ks):
        for sec in range(2): dsr(Bs[ks] + 2*sec, vXR, ks*1024 + sec*128, ('b', ks), 2, "ds_read_b64_tr_b16")
        for sec in range(2): dsr(As[ks] + 2*sec, vXR, ks*1024 + sec*128 + 16, ('a', ks), 2, "ds_read_b64_tr_b16")
    rdset(0); rdset(1)
    dma_ks(A); VM.issue('dma', 2)
    for ks in range(4):
        L.wait(('b', ks), ('ks', 0, ks), ('ks', 1, ks))
        c0 = "0" if ks == 0 else v(S0, 4); c1 = "0" if ks == 0 else v(S1, 4); cm = "0" if ks == 0 else v(SM, 4)
        A(f"v_mfma_f32_16x16x32_bf16 {v(S0,4)}, {v(ksdst[(0,ks)],4)}, {v(Bs[ks],4)}, {c0}")
        A(f"v_mfma_f32_16x16x32_bf16 {v(S1,4)}, {v(ksdst[(1,ks)],4)}, {v(Bs[ks],4)}, {c1}")
        L.wait(('a', ks))
        A(f"v_mfma_f32_16x16x32_bf16 {v(SM,4)}, {v(As[ks],4)}, {v(Bs[ks],4)}, {cm}")
        if ks < 2:
            for tau in range(2):
                ksdst[(tau, ks + 2)] = ksdst[(tau, ks)]
                dsr(ksdst[(tau, ks + 2)], 26 + ks, tau * 1024, ('ks', tau, ks + 2))
            rdset(ks + 2)
    scp = f"s[{sScale}:{sScale+1}]"
    for i in range(4):
        A(f"v_mov_b32_dpp v{S0+i}, v{S1+i} quad_perm:[0,1,2,3] row_mask:0xf bank_mask:0xc")
    A(f"v_pk_mul_f32 {v(S0,2)}, {v(S0,2)}, {scp}\nv_pk_mul_f32 {v(S0+2,2)}, {v(S0+2,2)}, {scp}")
    st(4)
    A(f"v_pk_mul_f32 {v(SM,2)}, {v(SM,2)}, {scp}\nv_pk_mul_f32 {v(SM+2,2)}, {v(SM+2,2)}, {scp}")
    M, TT = 26, 27
    A(f"v_max3_f32 v{M}, |v{S0}|, |v{S0+1}|, |v{S0+2}|\nv_max3_f32 v{TT}, |v{S0+3}|, |v{SM}|, |v{SM+1}|\nv_max3_f32 v{M}, v{M}, |v{SM+2}|, |v{SM+3}|\nv_max_f32 v{M}, v{M}, v{TT}")
    A(f"v_cmp_nge_f32 vcc, s{sBound}, v{M}\ns_cbranch_vccnz {Lfb}")
    A.label(Lexp)
    for i in range(4): A(f"v_exp_f32 v{S0+i}, v{S0+i}")
    for i in range(4): A(f"v_exp_f32 v{SM+i}, v{SM+i}")
    PB = 0; Y = 4; BM0 = 6; BM1 = 8
    DL, D0, D1 = 12, 28, 32
    A(f"v_cvt_pk_bf16_f32 v{PB}, v{S0}, v{S0+1}\nv_cvt_pk_bf16_f32 v{PB+1}, v{S0+2}, v{S0+3}")
    A(f"v_cvt_pk_bf16_f32 v{Y}, v{SM}, v{SM+1}\nv_cvt_pk_bf16_f32 v{Y+1}, v{SM+2}, v{SM+3}")
    A(f"v_mov_b32_dpp v{PB+2}, v{PB} row_ror:8 row_mask:0xf bank_mask:0xf\nv_mov_b32_dpp v{PB+3}, v{PB+1} row_ror:8 row_mask:0xf bank_mask:0xf")
    A(f"v_cndmask_b32 v{BM0}, 0, v{Y}, {s(sLo,2)}\nv_cndmask_b32 v{BM0+1}, 0, v{Y+1}, {s(sLo,2)}\nv_cndmask_b32 v{BM1}, 0, v{Y}, {s(sHi,2)}\nv_cndmask_b32 v{BM1+1}, 0, v{Y+1}, {s(sHi,2)}")
    VM.wait('vt')
    A(f"v_mfma_f32_16x16x32_bf16 {v(D0,4)}, {v(VT0,4)}, {v(PB,4)}, 0")
    A(f"v_mfma_f32_16x16x32_bf16 {v(D1,4)}, {v(VT1,4)}, {v(PB,4)}, 0")
    A(f"v_mfma_f32_16x16x16_bf16 {v(DL,4)}, {v(ONES,2)}, {v(PB,2)}, 0")
    A(f"v_mfma_f32_16x16x16_bf16 {v(D0,4)}, {v(VPK,2)}, {v(BM0,2)}, {v(D0,4)}")
    A(f"v_mfma_f32_16x16x16_bf16 {v(DL,4)}, {v(ONES,2)}, {v(PB+2,2)}, {v(DL,4)}")
    A(f"v_mfma_f32_16x16x16_bf16 {v(D1,4)}, {v(VPK,2)}, {v(BM1,2)}, {v(D1,4)}")
    A(f"v_mfma_f32_16x16x16_bf16 {v(DL,4)}, {v(ONES,2)}, {v(BM0,2)}, {v(DL,4)}")
    RB = [36, 44, 16]
    wl = sorted(WO_LDS.keys(), key=lambda k: WO_LDS[k])
    def ldw(j):
        o = WO_LDS[wl[j]]; R = RB[j % 3]
        dsr(R, vL16, o, ('w', j)); dsr(R + 4, vL16, o + 1024, ('w', j))
    ldw(0); ldw(1)
    A(f"v_xor_b32 v52, 16, v{vOR}\nv_xor_b32 v53, 128, v{vOR}\nv_xor_b32 v54, 144, v{vOR}")
    Lr = 26
    for i in range(4):
        A(f"v_mov_b32_dpp v{D0+i}, v{D1+i} row_ror:8 row_mask:0xf bank_mask:0xc")
    A(f"v_rcp_f32 v{Lr}, v{DL}")
    A(f"v_mul_f32 v{D0}, v{D0}, v{Lr}\nv_mul_f32 v{D0+1}, v{D0+1}, v{Lr}\nv_mul_f32 v{D0+2}, v{D0+2}, v{Lr}\nv_mul_f32 v{D0+3}, v{D0+3}, v{Lr}")
    A(f"v_cvt_pk_bf16_f32 v26, v{D0}, v{D0+1}\nv_cvt_pk_bf16_f32 v27, v{D0+2}, v{D0+3}")
    A(f"ds_write_b64 v{vOW}, v[26:27]"); L.issue('w')
    ACC = [28, 32]
    A(f"v_mov_b64 {v(28,2)}, 0\nv_mov_b64 {v(30,2)}, 0\nv_mov_b64 {v(32,2)}, 0\nv_mov_b64 {v(34,2)}, 0")
    L.all(); A("s_barrier")
    st(5)
    AO = {(0, 0): 0, (0, 1): 4, (1, 0): 8, (1, 1): 12}
    dsr(0, vOR, 0, ('o', 0, 0)); dsr(4, 52, 0, ('o', 0, 1)); dsr(8, 53, 0, ('o', 1, 0)); dsr(12, 54, 0, ('o', 1, 1))
    ldw(2)
    PK = 24
    def post_pair(a_):
        ac = ACC[a_ % 2]
        A(f"v_cvt_pk_bf16_f32 v{PK}, v{ac}, v{ac+1}\nv_cvt_pk_bf16_f32 v{PK+1}, v{ac+2}, v{ac+3}")
        so, off = [(sPst, 0), (sPst, 2048), (sPst2, 0), (sPst2, 2048), (sPst3, 0)][a_]
        A(f"buffer_store_dwordx2 {v(PK,2)}, v{vPS}, s[4:7], s{so} offen offset:{off}{sc}")
        if a_ < 3: A(f"v_mov_b64 {v(ac,2)}, 0\nv_mov_b64 {v(ac+2,2)}, 0")
    for a_ in range(5):
        ac = ACC[a_ % 2]
        if a_ == 4:
            A(f"s_cmp_ge_u32 s{sWv}, 2\ns_cbranch_scc1 {Lno4}")
        for kb in range(2):
            for sub in range(2):
                key = (a_, kb, sub)
                if a_ == 0: L.wait(('o', kb, sub))
                if key in WO_REG: Bop = r(WO_REG[key], 8)
                else:
                    j = wl.index(key); L.wait(('w', j)); Bop = v(RB[j % 3], 8)
                A(f"v_smfmac_f32_16x16x64_bf16 {v(ac,4)}, {v(AO[(kb,sub)],4)}, {Bop}, v{vIdx}")
                if key in WO_LDS and wl.index(key) + 3 < 10: ldw(wl.index(key) + 3)
                if a_ >= 1 and kb == 1 and sub == 0: post_pair(a_ - 1)
    post_pair(4)
    A(f"s_branch {Lno4}x")
    A.label(Lno4)
    A("s_nop 7")
    post_pair(3)
    A.label(Lno4 + "x")
    L.all()
    st(6)
    A(f"s_mov_b32 s{sT3}, 0")
    A(f"s_cmp_eq_u32 s{sTask}, -1\ns_cbranch_scc1 {Lnored}")
    SEL = 20
    A(f"v_bfe_u32 v{T0}, v{vXA}, 4, 1\nv_lshlrev_b32 v{T0}, 4, v{T0}\nv_mov_b32 v{T1}, 0x3f80\nv_lshlrev_b32 v{T1}, v{T0}, v{T1}\nv_bfe_u32 v{T0}, v{vXA}, 5, 3")
    for p in range(4): A(f"v_cmp_eq_u32 vcc, {p}, v{T0}\nv_cndmask_b32 v{SEL+p}, 0, v{T1}, vcc")
    if pdelay: A(f"s_sleep {pdelay}")
    A(f"s_mov_b32 s{sTO}, 0")
    A.label(Lrp)
    for j in range(4): A(f"buffer_load_dwordx4 {v(4*j,4)}, v{vPL}, s[4:7], s{sPld+j} offen sc1")
    A("s_waitcnt vmcnt(0)")
    A(f"v_max3_u32 v{T0}, v0, v4, v8\nv_max_u32 v{T0}, v{T0}, v12")
    A(f"v_cmp_eq_u32 vcc, -1, v{T0}\ns_cbranch_vccz {Lrok}")
    timeout_check(A, Lrp, Lfail)
    A.label(Lrok)
    RD = 16
    for j in range(4):
        c = "0" if j == 0 else v(RD, 4)
        A(f"v_mfma_f32_16x16x32_bf16 {v(RD,4)}, {v(4*j,4)}, {v(SEL,4)}, {c}")
    A(f"v_mov_b32 v{T0}, -1")
    A(f"v_permlane32_swap_b32 v{RD}, v{RD+2}\nv_permlane32_swap_b32 v{RD+1}, v{RD+3}")
    A(f"v_add_f32 v{RD}, v{RD}, v{RD+2}\nv_add_f32 v{RD+1}, v{RD+1}, v{RD+3}")
    A(f"v_cvt_pk_bf16_f32 v{PUB}, v{RD}, v{RD+1}")
    A(f"buffer_store_dword v{PUB}, v{vMS}, s[4:7], s{sMst} offen{sc}")
    A(f"buffer_store_dword v{T0}, v{vMS}, s[4:7], s{sMrst} offen{sc}")
    A(f"s_mov_b32 s{sT3}, 1")
    A.label(Lnored)
    if prof:
        st(7)
        Lnp = A.newlabel("Lnp")
        A(f"s_cmp_lg_u32 s{sWv}, 2\ns_cbranch_scc1 {Lnp}")
        A(f"s_lshl_b32 s{sT0}, s{sH}, 6\ns_add_u32 s{sT0}, s{sT0}, s{sS}\ns_lshl_b32 s{sT0}, s{sT0}, 5\ns_add_u32 s{sT0}, s{sT0}, {OFF_PROF}")
        A("s_mov_b64 exec, 1\nv_mov_b32 v1, 0")
        for i in range(8):
            A(f"v_mov_b32 v0, s{sSt+2*i}\nbuffer_store_dword v0, v1, s[4:7], s{sT0} offen offset:{4*i}")
        A("s_mov_b64 exec, -1")
        A.label(Lnp)
    advance_offsets(A)
    A(f"s_branch {Lstep}")
    A.label(Lfb)
    A(f"v_max3_f32 v{M}, v{S0}, v{S0+1}, v{S0+2}\nv_max3_f32 v{M}, v{M}, v{S0+3}, v{SM}\nv_max3_f32 v{M}, v{M}, v{SM+1}, v{SM+2}\nv_max_f32 v{M}, v{M}, v{SM+3}")
    A(f"v_max_f32_dpp v{M}, v{M}, v{M} row_ror:8 row_mask:0xf bank_mask:0xf")
    A(f"v_mov_b32 v{TT}, v{M}\nv_permlane16_swap_b32 v{TT}, v{M}\nv_max_f32 v{M}, v{M}, v{TT}")
    A(f"v_mov_b32 v{TT}, v{M}\nv_permlane32_swap_b32 v{TT}, v{M}\nv_max_f32 v{M}, v{M}, v{TT}")
    for i in range(4): A(f"v_sub_f32 v{S0+i}, v{S0+i}, v{M}\nv_sub_f32 v{SM+i}, v{SM+i}, v{M}")
    A(f"s_nop 1\ns_branch {Lexp}")
    A.label(Ldone)
    A("s_waitcnt vmcnt(0) lgkmcnt(0)")
```

```python
from asmgen import *
from chain3 import Cnt

sSA   = 8
sSB   = 12
sAoff = 24
sBoff = 26
sLdb  = 27
sNk   = 28
sWave = 17
sK, sStW, sStD, sA2, sB2, sM0, sDelta, sTa, sTb, sAi, sBi = 29, 30, 31, 32, 33, 34, 35, 36, 37, 38, 39
sLdb8 = 40
sLda32 = 41
sPlus, sMinus = 42, 43
sRs, sCs, sGs, sKs = 44, 45, 46, 47

class GemmCfg:
    def __init__(s, WM, WN, tokcols):
        s.WM, s.WN, s.tokcols = WM, WN, tokcols
        s.BM, s.BN = 64 * WM, 64 * WN
        s.SA = s.BM * 128; s.SB = WN * 8192; s.S = s.SA + s.SB
        s.nA = s.BM // 32
        s.nB = WN * 2
        s.ACC = 256
        s.vA = 8
        s.vB = 12
        s.vDA, s.vDB = 16, 17
        s.FR = 20
        s.nfr = (WM + WN) * 4
    def acc(s, i, j): return 256 + 16 * (i * s.WN + j)

def gemm_setup_lane(A, c):
    A("v_and_b32 v1, 63, v0")
    A(f"s_lshr_b32 s{sTa}, s{sWave}, 1\ns_and_b32 s{sTb}, s{sWave}, 1")
    A(f"""v_and_b32 v2, 31, v1
    s_mul_i32 s{sM0}, s{sTa}, {32*c.WM}
    v_add_u32 v2, s{sM0}, v2
    v_lshrrev_b32 v3, 5, v1
    v_bfe_u32 v4, v2, 1, 3
    v_xor_b32 v3, v3, v4
    v_lshlrev_b32 v3, 4, v3
    v_lshlrev_b32 v2, 7, v2
    v_add_u32 v{c.vA}, v2, v3""")
    for s_ in range(1, 4): A(f"v_xor_b32 v{c.vA+s_}, {32*s_}, v{c.vA}")
    A(f"""v_lshrrev_b32 v2, 5, v1
    v_lshlrev_b32 v2, 3, v2
    v_bfe_u32 v3, v1, 2, 2
    v_add_u32 v2, v2, v3
    v_lshlrev_b32 v2, 7, v2
    v_bfe_u32 v4, v1, 4, 1
    v_lshlrev_b32 v4, 5, v4
    v_add_u32 v2, v2, v4
    v_and_b32 v4, 3, v1
    v_lshlrev_b32 v4, 3, v4
    v_add_u32 v2, v2, v4
    v_bfe_u32 v3, v1, 3, 1
    v_lshlrev_b32 v3, 6, v3""")
    for j in range(c.WN):
        A(f"""s_mul_i32 s{sM0}, s{sTb}, {c.WN}
        s_add_u32 s{sM0}, s{sM0}, {j}
        s_and_b32 s{sAi}, s{sM0}, 1
        s_lshl_b32 s{sAi}, s{sAi}, 6
        s_lshr_b32 s{sM0}, s{sM0}, 1
        s_lshl_b32 s{sM0}, s{sM0}, 13
        s_add_u32 s{sM0}, s{sM0}, {c.SA}
        v_xor_b32 v4, s{sAi}, v3
        v_add_u32 v4, v4, v2
        v_add_u32 v{c.vB+j}, s{sM0}, v4""")
    A(f"""v_lshrrev_b32 v2, 3, v1
    v_mul_lo_u32 v2, v2, s{sRs}
    v_and_b32 v3, 7, v1
    v_lshrrev_b32 v4, 4, v1
    v_xor_b32 v3, v3, v4
    s_lshl_b32 s{sM0}, s{sTb}, 2
    v_xor_b32 v3, s{sM0}, v3
    v_mul_lo_u32 v3, v3, s{sCs}
    v_add_u32 v{c.vDA}, v2, v3""")
    A(f"""v_lshrrev_b32 v2, 3, v1
    v_mul_lo_u32 v2, v2, s{sLdb}
    v_and_b32 v3, 7, v1
    v_bfe_u32 v4, v1, 4, 1
    v_lshlrev_b32 v4, 2, v4
    v_xor_b32 v3, v3, v4
    v_lshlrev_b32 v3, 4, v3
    v_add_u32 v{c.vDB}, v2, v3""")

def dma_list(A, c):
    out = []
    for m in range(c.nA):
        def f(m=m):
            if m == 0: A(f"s_mov_b32 s{sAi}, s{sA2}\ns_lshl_b32 s{sM0}, s{sWave}, 10\ns_add_u32 s{sM0}, s{sM0}, s{sStW}")
            else: A(f"s_add_u32 s{sAi}, s{sAi}, s{sLda32}\ns_add_u32 s{sM0}, s{sM0}, 4096")
            A(f"s_mov_b32 m0, s{sM0}\nbuffer_load_dwordx4 v{c.vDA}, s[{sSA}:{sSA+3}], s{sAi} offen lds")
        out.append(f)
    for m in range(c.nB):
        def f(m=m):
            b, hi = m >> 1, m & 1
            if m == 0: A(f"s_mov_b32 s{sBi}, s{sB2}\ns_lshl_b32 s{sM0}, s{sWave}, 10\ns_add_u32 s{sM0}, s{sM0}, s{sStW}\ns_add_u32 s{sM0}, s{sM0}, {c.SA}")
            else:
                A(f"s_add_u32 s{sM0}, s{sM0}, 4096")
                if hi == 1: A(f"s_add_u32 s{sBi}, s{sBi}, s{sLdb8}")
                else: A(f"s_sub_u32 s{sBi}, s{sBi}, s{sLdb8}\ns_add_u32 s{sBi}, s{sBi}, 128")
            A(f"s_mov_b32 m0, s{sM0}\nbuffer_load_dwordx4 v{c.vDB}, s[{sSB}:{sSB+3}], s{sBi} offen lds")
        out.append(f)
    return out

def gemm_body(A, c, tag):
    nd = c.nA + c.nB
    L = Cnt(A, "lgkmcnt", 15)
    gemm_setup_lane(A, c)
    A(f"""s_mul_i32 s{sTb}, s{sWave}, s{sGs}
    s_add_u32 s{sA2}, s{sAoff}, s{sTb}
    s_lshl_b32 s{sTa}, s{sWave}, 3
    s_mul_i32 s{sTb}, s{sTa}, s{sLdb}
    s_add_u32 s{sB2}, s{sBoff}, s{sTb}
    s_lshl_b32 s{sLda32}, s{sGs}, 2
    s_lshl_b32 s{sLdb8}, s{sLdb}, 5
    s_mov_b32 s{sStW}, 0
    s_mov_b32 s{sPlus}, {c.S}
    s_mov_b32 s{sMinus}, {(-2*c.S) & 0xffffffff}""")
    for i in range(c.WM * c.WN * 16): A(f"v_accvgpr_write_b32 a{i}, 0")
    def adv():
        A(f"s_add_u32 s{sA2}, s{sA2}, s{sKs}\ns_lshl_b32 s{sTa}, s{sLdb}, 6\ns_add_u32 s{sB2}, s{sB2}, s{sTa}")
        A(f"s_add_u32 s{sStW}, s{sStW}, {c.S}\ns_cmp_eq_u32 s{sStW}, {3*c.S}\ns_cselect_b32 s{sStW}, 0, s{sStW}")
    for f in dma_list(A, c): f()
    adv()
    Lone = f"Lg1_{tag}"
    A(f"s_cmp_lt_u32 s{sNk}, 2\ns_cbranch_scc1 {Lone}")
    for f in dma_list(A, c): f()
    A.label(Lone)
    adv()
    A(f"s_mov_b32 s{sK}, 0\ns_mov_b32 s{sStD}, 0")
    Lk = f"Lgk_{tag}"; Lnd = f"Lgnd_{tag}"; Lw0 = f"Lgw0_{tag}"; Lw1 = f"Lgw1_{tag}"
    A.label(Lk)
    A(f"s_add_u32 s{sTa}, s{sK}, 1\ns_cmp_lt_u32 s{sTa}, s{sNk}\ns_cbranch_scc1 {Lw0}\ns_waitcnt vmcnt(0)\ns_branch {Lw1}")
    A.label(Lw0)
    A(f"s_waitcnt vmcnt({nd})")
    A.label(Lw1)
    A("s_barrier")
    def rdfr(s_, st):
        base = c.FR + st * c.nfr
        for i in range(c.WM):
            A(f"ds_read_b128 {v(base + 4*i, 4)}, v{c.vA + s_} offset:{i*4096}"); L.issue(('f', s_))
        for j in range(c.WN):
            for sec in range(2):
                A(f"ds_read_b64_tr_b16 {v(base + 4*c.WM + 4*j + 2*sec, 2)}, v{c.vB + j} offset:{(16*s_ + 4*sec)*128}"); L.issue(('f', s_))
    rdfr(0, 0)
    A(f"s_add_u32 s{sTa}, s{sK}, 2\ns_cmp_lt_u32 s{sTa}, s{sNk}\ns_cbranch_scc0 {Lnd}")
    for f in dma_list(A, c): f()
    A.label(Lnd)
    adv()
    for s_ in range(4):
        st = s_ & 1
        if s_ < 3: rdfr(s_ + 1, st ^ 1)
        L.wait(('f', s_))
        base = c.FR + st * c.nfr
        for i in range(c.WM):
            for j in range(c.WN):
                ta = v(base + 4*i, 4); wb = v(base + 4*c.WM + 4*j, 4); ac = r(c.acc(i, j), 16)
                if c.tokcols: A(f"v_mfma_f32_32x32x16_bf16 {ac}, {wb}, {ta}, {ac}")
                else: A(f"v_mfma_f32_32x32x16_bf16 {ac}, {ta}, {wb}, {ac}")
    A(f"s_add_u32 s{sStD}, s{sStD}, {c.S}\ns_cmp_eq_u32 s{sStD}, {3*c.S}\ns_cselect_b32 s{sDelta}, s{sMinus}, s{sPlus}\ns_cselect_b32 s{sStD}, 0, s{sStD}")
    for x in list(range(c.vA, c.vA + 4)) + list(range(c.vB, c.vB + c.WN)):
        A(f"v_add_u32 v{x}, s{sDelta}, v{x}")
    A(f"s_add_u32 s{sK}, s{sK}, 1\ns_cmp_lt_u32 s{sK}, s{sNk}\ns_cbranch_scc1 {Lk}")
    A("s_nop 7\ns_nop 7")

def epi_lane_rowmajor(A, c, sOutOff, sLdo, elem):
    A(f"""s_lshr_b32 s{sTa}, s{sWave}, 1
    s_and_b32 s{sTb}, s{sWave}, 1
    v_and_b32 v1, 63, v0
    v_and_b32 v2, 31, v1
    s_mul_i32 s{sM0}, s{sTa}, {32*c.WM}
    v_add_u32 v2, s{sM0}, v2
    v_mul_lo_u32 v2, v2, s{sLdo}
    v_lshrrev_b32 v3, 5, v1
    v_lshlrev_b32 v3, 4, v3
    s_mul_i32 s{sM0}, s{sTb}, {32*c.WN*elem}
    v_add_u32 v3, s{sM0}, v3
    v_add_u32 v2, v2, v3
    s_lshl_b32 s{sAi}, s{sLdo}, 5""")

def epi_bf16(A, c, srd, sOutOff, relu=False, tilestride_s=None, jstride=64, qstride=32, sc=""):
    T = c.FR
    A(f"s_mov_b32 s{sBi}, s{sOutOff}")
    for i in range(c.WM):
        for j in range(c.WN):
            ac = c.acc(i, j) - 256
            for q in range(4):
                for x in range(4): A(f"v_accvgpr_read_b32 v{T+16+x}, a{ac + 4*q + x}")
                if relu:
                    for x in range(4): A(f"v_max_f32 v{T+16+x}, 0, v{T+16+x}")
                A(f"v_cvt_pk_bf16_f32 v{T + 2*q}, v{T+16}, v{T+17}\nv_cvt_pk_bf16_f32 v{T + 2*q + 1}, v{T+18}, v{T+19}")
            for qp in range(2):
                b = T + 4 * qp
                A(f"v_permlane32_swap_b32 v{b}, v{b+2}\nv_permlane32_swap_b32 v{b+1}, v{b+3}")
                off = j * jstride + qp * qstride
                if off < 4096: A(f"buffer_store_dwordx4 {v(b,4)}, v2, s[{srd}:{srd+3}], s{sBi} offen offset:{off}{sc}")
                else: A(f"s_add_u32 s{sM0}, s{sBi}, {off}\nbuffer_store_dwordx4 {v(b,4)}, v2, s[{srd}:{srd+3}], s{sM0} offen{sc}")
            A("s_nop 1")
        if i < c.WM - 1: A(f"s_add_u32 s{sBi}, s{sBi}, s{sAi}")

def epi_f32(A, c, srd, sOutOff, sc=""):
    A(f"s_mov_b32 s{sBi}, s{sOutOff}")
    for i in range(c.WM):
        for j in range(c.WN):
            ac = c.acc(i, j) - 256
            for q in range(4):
                A(f"buffer_store_dwordx4 {a(ac + 4*q, 4)}, v2, s[{srd}:{srd+3}], s{sBi} offen offset:{j*128 + q*32}{sc}")
        if i < c.WM - 1: A(f"s_add_u32 s{sBi}, s{sBi}, s{sAi}")
```

```python
import re
REG = re.compile(r'\b([vas])\[(\d+):(\d+)\]|\b([vas])(\d+)\b|\b(vcc|exec|m0|scc)\b')
TRANS = ('v_exp_', 'v_log_', 'v_rcp_', 'v_rsq_', 'v_sqrt_', 'v_sin_', 'v_cos_')
def regs_of(op):
    out = []
    for m in REG.finditer(op):
        if m.group(1):
            out += [(m.group(1), i) for i in range(int(m.group(2)), int(m.group(3)) + 1)]
        elif m.group(4):
            out.append((m.group(4), int(m.group(5))))
        else:
            n = m.group(6)
            if n == 'vcc': out += [('s', 'vcc')]
            elif n == 'exec': out += [('s', 'exec')]
            elif n == 'm0': out += [('s', 'm0')]
    return out
def mfma_passes(op):
    if '32x32x64' in op or '16x16x128' in op: return 8
    if '32x32' in op: return 8
    if '16x16x4_f32' in op: return 8
    if '16x16' in op: return 4
    if '4x4' in op: return 2
    raise ValueError(op)
class Ins:
    def __init__(s, text):
        s.text = text
        t = text.split(';')[0].strip()
        s.op = t.split()[0] if t else ''
        rest = t[len(s.op):].strip()
        s.ops = [o.strip() for o in re.split(r',(?![^\[]*\])', rest)] if rest else []
        op = s.op
        s.kind = 'other'; s.w = []; s.r = []; s.A = []; s.B = []; s.C = []; s.passes = 0
        s.nops = 0
        s.dpp = ('row_' in t or 'quad_perm' in t or 'wave_' in t or '_dpp' in op)
        s.trans = op.startswith(TRANS)
        s.perm = op.startswith('v_permlane')
        s.lds_dma = False; s.wide_store = False
        o = s.ops
        if op == 's_nop':
            s.kind = 'nop'; s.nops = int(o[0], 0) + 1
        elif op.startswith('v_mfma') or op.startswith('v_smfmac'):
            s.kind = 'mfma'; s.passes = mfma_passes(op)
            s.w = regs_of(o[0]); s.A = regs_of(o[1]); s.B = regs_of(o[2])
            if op.startswith('v_smfmac'):
                s.C = regs_of(o[0]); s.B = s.B + regs_of(o[3].split()[0])
            else:
                s.C = regs_of(o[3].split()[0])
            s.r = s.A + s.B + s.C
        elif op.startswith('v_'):
            s.kind = 'valu'
            if op.startswith('v_cmp'):
                s.w = regs_of(o[0]); s.r = sum((regs_of(x) for x in o[1:]), [])
            elif op.startswith('v_permlane') and 'swap' in op:
                s.w = regs_of(o[0]) + regs_of(o[1]); s.r = list(s.w)
            elif op.startswith(('v_add_co', 'v_sub_co', 'v_addc_co', 'v_subb_co', 'v_subrev_co', 'v_div_scale', 'v_mad_u64')):
                s.w = regs_of(o[0]) + regs_of(o[1]); s.r = sum((regs_of(x) for x in o[2:]), [])
            else:
                s.w = regs_of(o[0]); s.r = sum((regs_of(x) for x in o[1:]), [])
                if op.startswith(('v_fmac', 'v_dot2c', 'v_mac', 'v_writelane', 'v_pk_fmac')) or s.dpp: s.r += s.w
                if op.startswith('v_cndmask') and len(o) == 3: s.r += [('s', 'vcc')]
                if op.startswith('v_cndmask') and '_e32' in op: s.r += [('s', 'vcc')]
        elif op.startswith('ds_'):
            s.kind = 'ds'
            if op.startswith(('ds_read', 'ds_bpermute', 'ds_permute', 'ds_swizzle')) or '_rtn' in op:
                s.w = regs_of(o[0]); s.r = sum((regs_of(x) for x in o[1:]), [])
            else:
                s.r = sum((regs_of(x) for x in o), [])
        elif op.startswith(('buffer_', 'global_', 'flat_')):
            s.kind = 'vmem'
            islds = bool(re.search(r'\blds\b', t))
            if 'load' in op and not islds:
                s.w = regs_of(o[0]); s.r = sum((regs_of(x) for x in o[1:]), [])
            elif 'atomic' in op and 'sc0' in t and op.startswith('buffer_'):
                s.w = regs_of(o[0]); s.r = sum((regs_of(x) for x in o), [])
            elif 'atomic' in op and 'sc0' in t:
                s.w = regs_of(o[0]); s.r = sum((regs_of(x) for x in o[1:]), [])
            else:
                s.r = sum((regs_of(x) for x in o), [])
                if islds: s.lds_dma = True; s.r.append(('s', 'm0'))
                if 'store' in op and ('x3' in op or 'x4' in op):
                    s.wide_store = True
                    s.data = regs_of(o[0]) if op.startswith('buffer_') else regs_of(o[1])
        elif op.startswith('s_'):
            s.kind = 'salu'
            if op.startswith(('s_cmp', 's_cbranch', 's_branch', 's_waitcnt', 's_barrier', 's_endpgm', 's_sleep', 's_setprio', 's_bitcmp')):
                s.r = sum((regs_of(x) for x in o), [])
            else:
                s.w = regs_of(o[0]) if o else []; s.r = sum((regs_of(x) for x in o[1:]), [])
def need(prev, cur):
    n = 0
    pw = set(prev.w)
    if prev.kind == 'valu':
        vw = {x for x in pw if x[0] in 'va'}
        sw = {x for x in pw if x[0] == 's'}
        if cur.kind == 'mfma' and vw & set(cur.r): n = max(n, 2)
        if cur.kind == 'valu':
            if (cur.dpp or cur.perm) and vw & set(cur.r): n = max(n, 2)
            if cur.op.startswith(('v_readlane', 'v_readfirstlane')) and vw & set(cur.r): n = max(n, 1)
            if prev.trans and not cur.trans and vw & set(cur.r): n = max(n, 1)
            if sw & set(cur.r): n = max(n, 4 if cur.op.startswith(('v_readlane', 'v_writelane')) else 2)
        if prev.trans and cur.kind in ('ds', 'vmem') and vw & set(cur.r): n = max(n, 1)
        if cur.kind == 'vmem' and sw & set(cur.r): n = max(n, 5)
        if cur.kind == 'salu' and sw & set(cur.r) and not cur.op.startswith('s_cbranch'): n = max(n, 3)
    if prev.kind == 'mfma':
        p = prev.passes
        big = {2: 5, 4: 8, 8: 12, 16: 20}[p]
        if cur.kind in ('valu', 'ds', 'vmem'):
            if pw & (set(cur.r) | set(cur.w)): n = max(n, big)
            if cur.kind == 'valu' and set(prev.C) & set(cur.w): n = max(n, {2: 1, 4: 3, 8: 7, 16: 15}[p])
        if cur.kind == 'mfma':
            if pw & (set(cur.A) | set(cur.B)): n = max(n, big)
            if pw & set(cur.C):
                if cur.C == prev.w and cur.passes == p: n = max(n, 2 if p == 2 else 0)
                else: n = max(n, {2: 4, 4: 6, 8: 10, 16: 18}[p])
            elif pw & set(cur.w):
                n = max(n, {2: 4, 4: 6, 8: 10, 16: 18}[p])
    if prev.kind == 'salu' and ('s', 'm0') in pw and cur.lds_dma: n = max(n, 1)
    if prev.wide_store and cur.kind == 'valu' and set(prev.data) & set(cur.w): n = max(n, 2)
    return n
MAXD = 21
def fix(lines, verbose=False):
    out = []; hist = []
    ninserted = 0
    for ln in lines:
        t = ln.strip()
        if not t or t.startswith(';') or t.startswith('.') or t.endswith(':') or t.startswith('//'):
            out.append(ln); continue
        cur = Ins(t)
        req = 0; dist = 0
        for prev in reversed(hist):
            nd = need(prev, cur)
            if nd > dist: req = max(req, nd - dist)
            dist += prev.nops if prev.kind == 'nop' else 1
            if dist >= MAXD: break
        while req > 0:
            k = min(req, 16)
            nop = Ins(f's_nop {k-1}')
            out.append(f'    s_nop {k-1}'); hist.append(nop); req -= k; ninserted += 1
        out.append(ln); hist.append(cur)
        if len(hist) > 64: hist = hist[-40:]
    return out, ninserted
```

```python
OFF_P    = 0x0000000
P_SLOT   = 0x80000
OFF_M    = 0x0100000
M_SLOT   = 0x4000
OFF_FLAG = 0x0120000
OFF_PROF = 0x0140000
OFF_MEMS = 0x0160000
MEMS_STRIDE = 9216
OFF_XN   = 0x0200000
OFF_Q    = 0x0800000
OFF_K    = 0x1800000
OFF_VT   = 0x2800000
OFF_KM   = 0x3800000
OFF_VM   = 0x3C00000
OFF_O    = 0x4000000
OFF_H    = 0x5000000
OFF_HN   = 0x5800000
OFF_H1   = 0x6000000
OFF_PART = 0x7400000
WS_SIZE  = 268435456
WREG = [0, 38912, 77824, 108544]
LDS_KS  = 139264
LDS_XQK = 147456
LDS_MEM = 151552
LDS_XO  = 160768
LDS_SPARE = 162816
LDS_TOTAL = 163840
```

```python
from asmgen import *
from layout import *
import gemm as G
from gemm import *

def srd(A, d, karg, size):
    A(f"s_load_dwordx2 s[{d}:{d+1}], s[0:1], {karg}\ns_waitcnt lgkmcnt(0)\ns_mov_b32 s{d+2}, {size}\ns_mov_b32 s{d+3}, 0x20000")
def wave_id(A):
    A(f"v_lshrrev_b32 v1, 6, v0\ns_nop 0\nv_readfirstlane_b32 s{sWave}, v1")
sWSr = 4
WSZ = WS_SIZE

def std_A(A, lda):
    A(f"s_mov_b32 s{sRs}, {lda}\ns_mov_b32 s{sCs}, 16\ns_mov_b32 s{sGs}, {8*lda}\ns_mov_b32 s{sKs}, 128")

def copy_srd(A, d, s_):
    for i in range(4): A(f"s_mov_b32 s{d+i}, s{s_+i}")

def qkv_task(A, X, mem, tag):
    c = GemmCfg(4, 2, tokcols=(X != 2))
    copy_srd(A, sSA, sWSr)
    srd(A, sSB, 16 + 8 * X, 4718592)
    if not mem:
        std_A(A, 1152)
        A(f"s_mul_i32 s{sAoff}, s51, {256*1152}\ns_add_u32 s{sAoff}, s{sAoff}, {OFF_XN}")
    else:
        A(f"s_mov_b32 s{sRs}, 16\ns_mov_b32 s{sCs}, 128\ns_mov_b32 s{sGs}, {MEMS_STRIDE}\ns_mov_b32 s{sKs}, 1024")
        A(f"s_mul_i32 s{sAoff}, s51, {32*MEMS_STRIDE}\ns_add_u32 s{sAoff}, s{sAoff}, {OFF_MEMS}")
    A(f"s_lshl_b32 s{sBoff}, s50, 8\ns_mov_b32 s{sLdb}, 8192\ns_mov_b32 s{sNk}, 9")
    gemm_body(A, c, tag)
    if X != 2:
        A(f"s_mov_b32 s52, 8192")
        epi_lane_rowmajor(A, c, None, 52, 2)
        base = (OFF_Q if X == 0 else OFF_K) if not mem else OFF_KM
        A(f"s_mul_i32 s53, s51, {256*8192}\ns_lshl_b32 s54, s50, 8\ns_add_u32 s53, s53, s54\ns_add_u32 s53, s53, {base}")
        epi_bf16(A, c, sWSr, 53)
    else:
        es = 64 if not mem else 16
        hs = 16 if not mem else 65536
        seg = 262144
        A(f"""s_lshr_b32 s{sTa}, s{sWave}, 1
        s_and_b32 s{sTb}, s{sWave}, 1
        v_and_b32 v1, 63, v0
        v_and_b32 v2, 31, v1
        s_mul_i32 s{sM0}, s{sTb}, {32*c.WN}
        v_add_u32 v2, s{sM0}, v2
        v_mul_u32_u24 v2, {es}, v2
        v_lshrrev_b32 v3, 5, v1
        v_mul_u32_u24 v3, {hs}, v3
        v_add_u32 v2, v2, v3
        s_mul_i32 s{sM0}, s{sTa}, {c.WM*seg}
        v_add_u32 v2, s{sM0}, v2
        s_mov_b32 s{sAi}, {seg}""")
        if not mem:
            A(f"s_mul_i32 s53, s51, {8*seg}\ns_lshl_b32 s54, s50, 13\ns_add_u32 s53, s53, s54\ns_add_u32 s53, s53, {OFF_VT}")
            epi_bf16(A, c, sWSr, 53, jstride=2048, qstride=32)
        else:
            A(f"s_mul_i32 s53, s51, {8*seg}\ns_lshl_b32 s54, s50, 11\ns_add_u32 s53, s53, s54\ns_add_u32 s53, s53, {OFF_VM}")
            epi_bf16(A, c, sWSr, 53, jstride=512, qstride=131072)
    A("s_waitcnt vmcnt(0)\ns_barrier")

def k_qkv(A):
    A("s_cmp_ge_u32 s2, 256\ns_cbranch_scc1 Lqkv_exit")
    wave_id(A); srd(A, sWSr, 96, WSZ)
    A("s_and_b32 s50, s2, 7\ns_lshl_b32 s50, s50, 2\ns_lshr_b32 s51, s2, 3\ns_and_b32 s51, s51, 3\ns_add_u32 s50, s50, s51\ns_lshr_b32 s51, s2, 5")
    for X in (1, 2, 0): qkv_task(A, X, False, f"qkv{X}")
    A.label("Lqkv_exit"); A("s_endpgm")

def k_kmvm(A):
    A("s_cmp_ge_u32 s2, 128\ns_cbranch_scc1 Lkm_exit")
    wave_id(A); srd(A, sWSr, 96, WSZ)
    A("s_and_b32 s50, s2, 31\ns_lshr_b32 s51, s2, 5\ns_and_b32 s51, s51, 1\ns_cmp_ge_u32 s2, 64\ns_cbranch_scc1 Lkm_v")
    qkv_task(A, 1, True, "km")
    A("s_branch Lkm_exit")
    A.label("Lkm_v")
    qkv_task(A, 2, True, "vm")
    A.label("Lkm_exit"); A("s_endpgm")

def k_splitk(A, name, a_off, lda, bkarg, nsplit, ksteps, part_off):
    c = GemmCfg(2, 3, True)
    ntask = 48 * nsplit
    A(f"s_cmp_ge_u32 s2, {ntask}\ns_cbranch_scc1 L{name}_exit")
    wave_id(A); srd(A, sWSr, 96, WSZ)
    copy_srd(A, sSA, sWSr)
    srd(A, sSB, bkarg, nsplit * ksteps * 64 * 1152)
    import math
    def divmagic(d): return (2**32 + d - 1) // d
    A(f"s_mov_b32 s55, {divmagic(nsplit)}\ns_mul_hi_u32 s50, s2, s55\ns_mul_i32 s51, s50, {nsplit}\ns_sub_u32 s52, s2, s51")
    A(f"s_mov_b32 s55, {divmagic(3)}\ns_mul_hi_u32 s51, s50, s55\ns_mul_i32 s53, s51, 3\ns_sub_u32 s53, s50, s53")
    std_A(A, lda)
    A(f"s_mul_i32 s{sAoff}, s51, {128*lda}\ns_mul_i32 s54, s52, {ksteps*128}\ns_add_u32 s{sAoff}, s{sAoff}, s54\ns_add_u32 s{sAoff}, s{sAoff}, {a_off}")
    A(f"s_mul_i32 s{sBoff}, s52, {ksteps*64*1152}\ns_mul_i32 s54, s53, 384\ns_add_u32 s{sBoff}, s{sBoff}, s54\ns_mov_b32 s{sLdb}, 1152\ns_mov_b32 s{sNk}, {ksteps}")
    gemm_body(A, c, name)
    A("s_mov_b32 s56, 2304")
    epi_lane_rowmajor(A, c, None, 56, 4)
    A(f"s_mul_i32 s57, s52, {2048*2304}\ns_mul_i32 s54, s51, {128*2304}\ns_add_u32 s57, s57, s54\ns_mul_i32 s54, s53, 768\ns_add_u32 s57, s57, s54\ns_add_u32 s57, s57, {part_off}")
    epi_f32(A, c, sWSr, 57)
    A.label(f"L{name}_exit"); A("s_endpgm")

def k_ffn1(A):
    c = GemmCfg(2, 3, True)
    A("s_cmp_ge_u32 s2, 256\ns_cbranch_scc1 Lf1_exit")
    wave_id(A); srd(A, sWSr, 96, WSZ)
    copy_srd(A, sSA, sWSr)
    srd(A, sSB, 64, 576 * 9216)
    A("s_mov_b32 s58, s2")
    A.label("Lf1_loop")
    A(f"s_mov_b32 s55, {(2**32 + 23)//24}\ns_mul_hi_u32 s51, s58, s55\ns_mul_i32 s53, s51, 24\ns_sub_u32 s53, s58, s53")
    std_A(A, 1152)
    A(f"s_mul_i32 s{sAoff}, s51, {128*1152}\ns_add_u32 s{sAoff}, s{sAoff}, {OFF_HN}")
    A(f"s_mul_i32 s{sBoff}, s53, 384\ns_mov_b32 s{sLdb}, 9216\ns_mov_b32 s{sNk}, 9")
    gemm_body(A, c, "f1")
    A("s_mov_b32 s56, 9216")
    epi_lane_rowmajor(A, c, None, 56, 2)
    A(f"s_mul_i32 s57, s51, {128*9216}\ns_mul_i32 s54, s53, 384\ns_add_u32 s57, s57, s54\ns_add_u32 s57, s57, {OFF_H1}")
    epi_bf16(A, c, sWSr, 57, relu=True)
    A("s_waitcnt vmcnt(0)\ns_barrier")
    A("s_add_u32 s58, s58, 256\ns_cmp_lt_u32 s58, 384\ns_cbranch_scc1 Lf1_loop")
    A.label("Lf1_exit"); A("s_endpgm")

def wave_sum(A, x, t):
    for sh in (1, 2, 4, 8):
        A(f"v_add_f32_dpp v{x}, v{x}, v{x} row_ror:{sh} row_mask:0xf bank_mask:0xf")
    A(f"v_mov_b32 v{t}, v{x}\nv_permlane16_swap_b32 v{t}, v{x}\nv_add_f32 v{x}, v{x}, v{t}")
    A(f"v_mov_b32 v{t}, v{x}\nv_permlane32_swap_b32 v{t}, v{x}\nv_add_f32 v{x}, v{x}, v{t}")

def ln_rows(A, name, mode, nparts=0, part_off=0):
    A(f"s_cmp_ge_u32 s2, 256\ns_cbranch_scc1 L{name}_exit")
    wave_id(A); srd(A, sWSr, 96, WSZ)
    srd(A, 8, 0, 2048 * 1152)
    if mode == 'fin': srd(A, 12, 80, 2048 * 1152)
    A(f"v_and_b32 v1, 63, v0\nv_cmp_gt_u32 vcc, 36, v1\nv_lshlrev_b32 v2, 4, v1\nv_mov_b32 v3, 0x80000000\nv_cndmask_b32 v2, v3, v2, vcc")
    A(f"v_lshlrev_b32 v4, 5, v1\nv_cndmask_b32 v4, v3, v4, vcc")
    A("s_mov_b64 s[60:61], vcc")
    A(f"s_lshl_b32 s50, s2, 3\ns_lshl_b32 s51, s{sWave}, 1\ns_add_u32 s50, s50, s51")
    for rr in range(2):
        A(f"s_add_u32 s51, s50, {rr}\ns_mul_i32 s52, s51, 1152\ns_mul_i32 s53, s51, 2304")
        F = 16
        if mode in ('ln1', 'ln2'):
            A(f"buffer_load_dwordx4 v[8:11], v2, s[8:11], s52 offen\nbuffer_load_dwordx4 v[12:15], v2, s[8:11], s52 offen offset:576")
            A("s_waitcnt vmcnt(0)")
            for i in range(8):
                A(f"v_lshlrev_b32 v{F+2*i}, 16, v{8+i}\nv_and_b32 v{F+2*i+1}, 0xffff0000, v{8+i}")
        else:
            A(f"s_add_u32 s54, s53, {OFF_H}")
            A(f"buffer_load_dwordx4 v[16:19], v4, s[4:7], s54 offen\nbuffer_load_dwordx4 v[20:23], v4, s[4:7], s54 offen offset:16")
            A(f"buffer_load_dwordx4 v[24:27], v4, s[4:7], s54 offen offset:1152\nbuffer_load_dwordx4 v[28:31], v4, s[4:7], s54 offen offset:1168")
            A("s_waitcnt vmcnt(0)")
        for p in range(nparts):
            A(f"s_add_u32 s54, s53, {part_off + p*2048*2304}")
            A(f"buffer_load_dwordx4 v[32:35], v4, s[4:7], s54 offen\nbuffer_load_dwordx4 v[36:39], v4, s[4:7], s54 offen offset:16")
            A(f"buffer_load_dwordx4 v[40:43], v4, s[4:7], s54 offen offset:1152\nbuffer_load_dwordx4 v[44:47], v4, s[4:7], s54 offen offset:1168")
            A("s_waitcnt vmcnt(0)")
            for i in range(16): A(f"v_add_f32 v{F+i}, v{F+i}, v{32+i}")
        if mode == 'fin':
            for i in range(8): A(f"v_cvt_pk_bf16_f32 v{8+i}, v{F+2*i}, v{F+2*i+1}")
            A(f"buffer_store_dwordx4 v[8:11], v2, s[12:15], s52 offen\nbuffer_store_dwordx4 v[12:15], v2, s[12:15], s52 offen offset:576")
            A("s_waitcnt vmcnt(0)")
            continue
        if mode == 'ln2':
            A(f"s_add_u32 s54, s53, {OFF_H}")
            A(f"buffer_store_dwordx4 v[16:19], v4, s[4:7], s54 offen\nbuffer_store_dwordx4 v[20:23], v4, s[4:7], s54 offen offset:16")
            A(f"buffer_store_dwordx4 v[24:27], v4, s[4:7], s54 offen offset:1152\nbuffer_store_dwordx4 v[28:31], v4, s[4:7], s54 offen offset:1168")
        A(f"v_add_f32 v5, v{F}, v{F+1}")
        for i in range(2, 16): A(f"v_add_f32 v5, v5, v{F+i}")
        wave_sum(A, 5, 6)
        A("v_mul_f32 v5, 0x3ae38e39, v5")
        for i in range(16): A(f"v_sub_f32 v{48+i}, v{F+i}, v5")
        A(f"v_mul_f32 v6, v48, v48")
        for i in range(1, 16): A(f"v_fmac_f32 v6, v{48+i}, v{48+i}")
        A("v_cndmask_b32 v6, 0, v6, s[60:61]")
        wave_sum(A, 6, 7)
        A("v_mov_b32 v7, 0x3727c5ac\nv_fmac_f32 v7, 0x3ae38e39, v6\nv_rsq_f32 v7, v7")
        for i in range(16): A(f"v_mul_f32 v{48+i}, v{48+i}, v7")
        for i in range(8): A(f"v_cvt_pk_bf16_f32 v{8+i}, v{48+2*i}, v{48+2*i+1}")
        dst = OFF_XN if mode == 'ln1' else OFF_HN
        A(f"s_add_u32 s54, s52, {dst}")
        A(f"buffer_store_dwordx4 v[8:11], v2, s[4:7], s54 offen\nbuffer_store_dwordx4 v[12:15], v2, s[4:7], s54 offen offset:576")
        A("s_waitcnt vmcnt(0)")
    A.label(f"L{name}_exit"); A("s_endpgm")

def k_att(A):
    A("s_cmp_ge_u32 s2, 512\ns_cbranch_scc1 Latt_exit")
    wave_id(A); srd(A, sWSr, 96, WSZ)
    A(f"s_lshl_b32 s50, s2, 2\ns_add_u32 s50, s50, s{sWave}\ns_and_b32 s51, s50, 31\ns_lshr_b32 s52, s50, 5")
    A("v_and_b32 v1, 63, v0\nv_and_b32 v2, 31, v1\nv_lshrrev_b32 v3, 5, v1")
    A("v_lshlrev_b32 v4, 13, v2\nv_lshlrev_b32 v5, 4, v3\nv_add_u32 v4, v4, v5")
    A("""v_and_b32 v6, 19, v2
    v_bfe_u32 v7, v2, 3, 1
    v_lshlrev_b32 v7, 2, v7
    v_or_b32 v6, v6, v7
    v_bfe_u32 v7, v2, 2, 1
    v_lshlrev_b32 v7, 3, v7
    v_or_b32 v6, v6, v7""")
    A("v_lshlrev_b32 v7, 13, v6\nv_add_u32 v7, v7, v5")
    A("v_cmp_gt_u32 vcc, 8, v6\nv_mov_b32 v9, 0x80000000\nv_cndmask_b32 v8, v9, v7, vcc")
    A(f"s_lshl_b32 s53, s52, 18\ns_lshl_b32 s54, s51, 8\ns_add_u32 s53, s53, s54\ns_add_u32 s55, s53, {OFF_Q}\ns_add_u32 s56, s53, {OFF_K}")
    A(f"s_lshl_b32 s57, s52, 16\ns_add_u32 s57, s57, s54\ns_add_u32 s57, s57, {OFF_KM}")
    QF, KF, MF = 16, 48, 80
    for ks in range(8):
        A(f"buffer_load_dwordx4 {v(QF+4*ks,4)}, v4, s[4:7], s55 offen offset:{32*ks}")
        A(f"buffer_load_dwordx4 {v(KF+4*ks,4)}, v7, s[4:7], s56 offen offset:{32*ks}")
        A(f"buffer_load_dwordx4 {v(MF+4*ks,4)}, v8, s[4:7], s57 offen offset:{32*ks}")
    A("v_lshlrev_b32 v10, 6, v2\nv_add_u32 v10, v10, v5")
    A(f"s_lshl_b32 s58, s52, 5\ns_add_u32 s58, s58, s51\ns_lshl_b32 s59, s58, 13\ns_add_u32 s59, s59, {OFF_VT}")
    A("v_lshlrev_b32 v11, 4, v2\nv_cmp_eq_u32 vcc, 0, v3\nv_cndmask_b32 v11, v9, v11, vcc")
    A(f"s_lshl_b32 s60, s58, 11\ns_add_u32 s60, s60, {OFF_VM}")
    VF, VMF = 112, 144
    for T in range(4):
        for ks in range(2):
            A(f"s_add_u32 s61, s59, {T*2048}\nbuffer_load_dwordx4 {v(VF+8*T+4*ks,4)}, v10, s[4:7], s61 offen offset:{32*ks}")
        A(f"buffer_load_dwordx4 {v(VMF+4*T,4)}, v11, s[4:7], s60 offen offset:{T*512}")
    S, SMm = 160, 176
    A("s_waitcnt vmcnt(12)")
    for ks in range(8):
        c0 = "0" if ks == 0 else v(S, 16); c1 = "0" if ks == 0 else v(SMm, 16)
        A(f"v_mfma_f32_32x32x16_bf16 {v(S,16)}, {v(KF+4*ks,4)}, {v(QF+4*ks,4)}, {c0}")
        A(f"v_mfma_f32_32x32x16_bf16 {v(SMm,16)}, {v(MF+4*ks,4)}, {v(QF+4*ks,4)}, {c1}")
    A("v_mov_b32 v12, 0xff800000\nv_lshlrev_b32 v13, 3, v3")
    for i in range(16):
        kb = i if i < 8 else 16 + i - 8
        A(f"v_add_u32 v14, {kb}, v13\nv_cmp_le_u32 vcc, v14, v2\nv_cndmask_b32 v{S+i}, v12, v{S+i}, vcc")
    A("v_cmp_eq_u32 vcc, 0, v3")
    for i in range(8): A(f"v_cndmask_b32 v{SMm+i}, v12, v{SMm+i}, vcc")
    A(f"v_max_f32 v14, v{S}, v{S+1}")
    for i in range(2, 16): A(f"v_max_f32 v14, v14, v{S+i}")
    for i in range(8): A(f"v_max_f32 v14, v14, v{SMm+i}")
    A("v_mov_b32 v15, v14\nv_permlane32_swap_b32 v15, v14\nv_max_f32 v14, v14, v15")
    A("s_mov_b32 s62, 0x3e0293ee\nv_mul_f32 v14, s62, v14")
    for i in range(16): A(f"v_fma_f32 v{S+i}, v{S+i}, s62, -v14\nv_exp_f32 v{S+i}, v{S+i}")
    for i in range(8): A(f"v_fma_f32 v{SMm+i}, v{SMm+i}, s62, -v14\nv_exp_f32 v{SMm+i}, v{SMm+i}")
    A(f"v_add_f32 v15, v{S}, v{S+1}")
    for i in range(2, 16): A(f"v_add_f32 v15, v15, v{S+i}")
    for i in range(8): A(f"v_add_f32 v15, v15, v{SMm+i}")
    A("v_mov_b32 v12, v15\nv_permlane32_swap_b32 v12, v15\nv_add_f32 v15, v15, v12\nv_rcp_f32 v15, v15")
    PBs, PBm = 16, 24
    for i in range(16): A(f"v_mul_f32 v{S+i}, v{S+i}, v15")
    for i in range(8): A(f"v_mul_f32 v{SMm+i}, v{SMm+i}, v15")
    for i in range(8): A(f"v_cvt_pk_bf16_f32 v{PBs+i}, v{S+2*i}, v{S+2*i+1}")
    for i in range(4): A(f"v_cvt_pk_bf16_f32 v{PBm+i}, v{SMm+2*i}, v{SMm+2*i+1}")
    A("s_waitcnt vmcnt(0)")
    OD = 192
    for T in range(4):
        o = v(OD + 16*T, 16)
        A(f"v_mfma_f32_32x32x16_bf16 {o}, {v(VF+8*T,4)}, {v(PBs,4)}, 0")
        A(f"v_mfma_f32_32x32x16_bf16 {o}, {v(VF+8*T+4,4)}, {v(PBs+4,4)}, {o}")
        A(f"v_mfma_f32_32x32x16_bf16 {o}, {v(VMF+4*T,4)}, {v(PBm,4)}, {o}")
    A(f"s_sub_u32 s55, s55, {OFF_Q}\ns_add_u32 s55, s55, {OFF_O}")
    A("v_lshlrev_b32 v4, 13, v2\nv_add_u32 v4, v4, v5")
    for T in range(4):
        for q in range(4):
            A(f"v_cvt_pk_bf16_f32 v{48+2*q}, v{OD+16*T+4*q}, v{OD+16*T+4*q+1}\nv_cvt_pk_bf16_f32 v{48+2*q+1}, v{OD+16*T+4*q+2}, v{OD+16*T+4*q+3}")
        for qp in range(2):
            b = 48 + 4 * qp
            A(f"v_permlane32_swap_b32 v{b}, v{b+2}\nv_permlane32_swap_b32 v{b+1}, v{b+3}")
            A(f"buffer_store_dwordx4 {v(b,4)}, v4, s[4:7], s55 offen offset:{T*64 + qp*32}")
        A("s_nop 1")
    A.label("Latt_exit"); A("s_endpgm")
```

```python
import sys
from asmgen import *
from layout import *
import chain3 as chain, hazard, stages as S
prefix = "sq"
kern = []
def add(name, fn, grid, lds, vgpr=512, accum=256):
    A = Asm(); fn(A)
    lines, n = hazard.fix(A.lines)
    kern.append((name + "_kernel", "\n".join(lines), grid, lds, vgpr, accum))
def k_chain(A):
    A("s_cmp_ge_u32 s2, 256\ns_cbranch_scc1 Lexit")
    A("s_getreg_b32 s3, hwreg(HW_REG_XCC_ID)\ns_and_b32 s3, s3, 15\ns_cmp_lg_u32 s3, 0\ns_cbranch_scc1 Lexit")
    A("s_load_dwordx2 s[12:13], s[0:1], 88\ns_waitcnt lgkmcnt(0)\ns_mov_b32 s14, 256\ns_mov_b32 s15, 0x20000")
    A("v_lshrrev_b32 v1, 6, v0\nv_readfirstlane_b32 s17, v1\ns_cmp_lg_u32 s17, 0\ns_cbranch_scc1 Ltk1")
    A("s_mov_b64 exec, 1\nv_mov_b32 v2, 1\nv_mov_b32 v3, 0\nbuffer_atomic_add v2, v3, s[12:15], 0 offen sc0\ns_waitcnt vmcnt(0)")
    A(f"v_mov_b32 v3, {LDS_SPARE}\nds_write_b32 v3, v2\ns_waitcnt lgkmcnt(0)\ns_mov_b64 exec, -1")
    A.label("Ltk1")
    A(f"s_barrier\nv_mov_b32 v3, {LDS_SPARE}\nds_read_b32 v2, v3\ns_waitcnt lgkmcnt(0)\nv_readfirstlane_b32 s16, v2")
    A("s_cmp_ge_u32 s16, 32\ns_cbranch_scc1 Lexit")
    chain.chain_setup(A); chain.chain_load_weights(A); chain.chain_init_buffers(A, "")
    A("s_waitcnt vmcnt(0)\ns_barrier\ns_cmp_lg_u32 s17, 0\ns_cbranch_scc1 Ltb2")
    A("s_mov_b64 exec, 1\nv_mov_b32 v2, 1\nv_mov_b32 v3, 4\nbuffer_atomic_add v2, v3, s[12:15], 0 offen\ns_mov_b32 s19, 0")
    A.label("Ltb1")
    A("buffer_load_dword v2, v3, s[12:15], 0 offen sc1\ns_waitcnt vmcnt(0)\nv_cmp_le_u32 vcc, 32, v2\ns_cbranch_vccnz Ltb3")
    A(f"s_add_u32 s19, s19, 1\ns_cmp_lt_u32 s19, {1<<18}\ns_cbranch_scc1 Ltb1")
    A.label("Ltb3"); A("s_mov_b64 exec, -1"); A.label("Ltb2"); A("s_barrier")
    chain.chain_loop(A, fast=True)
    A("s_branch Lexit")
    A.label("Lchain_fail")
    A("s_mov_b64 exec, 1\nv_mov_b32 v2, 0xdead\nv_mov_b32 v3, 64\nbuffer_store_dword v2, v3, s[12:15], 0 offen\ns_waitcnt vmcnt(0)")
    A.label("Lexit"); A("s_endpgm")
add("ln1", lambda A: S.ln_rows(A, "ln1", "ln1"), 256, 0, 64, 64)
add("qkv", S.k_qkv, 256, 147456)
add("chain", k_chain, 256, LDS_TOTAL)
add("kmvm", S.k_kmvm, 128, 147456)
add("att", S.k_att, 512, 0, 256, 256)
add("wo", lambda A: S.k_splitk(A, "wo", OFF_O, 8192, 40, 4, 16, OFF_PART), 192, 122880)
add("ln2", lambda A: S.ln_rows(A, "ln2", "ln2", 4, OFF_PART), 256, 0, 64, 64)
add("ffn1", S.k_ffn1, 256, 122880)
add("ffn2", lambda A: S.k_splitk(A, "ffn2", OFF_H1, 9216, 72, 4, 18, OFF_PART), 192, 122880)
add("fin", lambda A: S.ln_rows(A, "fin", "fin", 4, OFF_PART), 256, 0, 64, 64)
only = sys.argv[2].split(",") if len(sys.argv) > 2 else None
txt = ""
for (n, _, g, l, _, _) in kern:
    if only and n[:-7] not in only: continue
    txt += f"; @launch kernel={n} grid=({g},1,1) block=(256,1,1) lds={l}\n"
txt += KHDR
for (n, body, g, l, vg, ac) in kern:
    if only and n[:-7] not in only: continue
    txt += kernel_begin(n) + body + "\n"
for (n, body, g, l, vg, ac) in kern:
    if only and n[:-7] not in only: continue
    txt += kernel_desc(n, vg, ac, 102)
open(sys.argv[1], "w").write(txt)
print("written", sys.argv[1], len(txt))
```
